```python
import torch

def _softmax(x, axis=-1):
    return torch.softmax(x, dim=axis)
def _gelu(x):
    return torch.nn.functional.gelu(x, approximate="tanh")
def _silu(x):
    return torch.nn.functional.silu(x)
def _sigmoid(x):
    return torch.sigmoid(x)
def _layernorm(x, axis=-1, eps=1e-5):
    m = x.mean(dim=axis, keepdim=True)
    v = x.var(dim=axis, keepdim=True, unbiased=False)
    return (x - m) / torch.sqrt(v + eps)
def _scatter_add(tgt, idx, src, axis=0):
    return tgt.clone().index_add_(axis, idx, src)
def _segment_sum(src, seg, n):
    out = torch.zeros((n,) + src.shape[1:], dtype=src.dtype)
    return out.index_add_(0, seg, src)
def _pad(x, pw):
    flat = tuple(v for pair in reversed(pw) for v in pair)
    return torch.nn.functional.pad(x, flat)

kernel_name = 'standalone__gqa_softmax__near_ridge'

def setup_inputs():

    _w = (lambda a: (lambda t: t.to(torch.bfloat16) if t.is_floating_point() else t)(torch.as_tensor(a)))
    B, Hq, Hkv, Sq, Sk, D = 16, 32, 4, 48, 1024, 128
    return {
        "q": _w((lambda *s: torch.randn(*s, dtype=torch.bfloat16) * 0.8)(B, Hq, Sq, D)),
        "k": _w((lambda *s: torch.randn(*s, dtype=torch.bfloat16) * 0.8)(B, Hkv, Sk, D)),
        "v": _w((lambda *s: torch.randn(*s, dtype=torch.bfloat16) * 0.05)(B, Hkv, Sk, D)),
    }

def reference(q, k, v):
    B, Hq, Sq, D = q.shape
    Hkv = k.shape[1]
    rep = Hq // Hkv
    k = (lambda x, n, axis: torch.repeat_interleave(x, n, dim=axis))(k, rep, axis=1)
    v = (lambda x, n, axis: torch.repeat_interleave(x, n, dim=axis))(v, rep, axis=1)
    scale = D ** -0.5
    scores = torch.einsum("bhqd,bhkd->bhqk", q, k) * scale
    p = _softmax(scores, axis=-1)
    return torch.einsum("bhqk,bhkd->bhqd", p, v)
```

```python
import re

def isize(t):
    t = t.strip()
    op = t.split()[0]
    if op.endswith(':') or op.startswith('.') or op.startswith(';'):
        return 0
    if op.startswith(('v_mfma', 'ds_', 'buffer_', 'global_', 'flat_', 's_load', 's_memtime', 's_memrealtime', 'v_pk_', 'v_accvgpr')):
        return 8
    vop3 = ('v_fma_f32', 'v_max3_f32', 'v_min3_f32', 'v_cvt_pk_bf16_f32', 'v_lshl_add_u32', 'v_add_lshl_u32', 'v_add3_u32',
            'v_and_or_b32', 'v_lshl_or_b32', 'v_mul_lo_u32', 'v_bfe_u32', 'v_mad_u32_u24', 'v_readlane_b32', 'v_writelane_b32', 'v_xad_u32', 'v_or3_b32', 'v_perm_b32', 'v_bfi_b32', 'v_mbcnt_lo_u32_b32', 'v_mbcnt_hi_u32_b32', 'v_med3_f32')
    if op in vop3 or op.endswith('_e64'):
        return 8
    args = t[len(op):]
    args = args.split(';')[0]
    lit = False
    if not op.startswith(('s_waitcnt', 's_nop', 's_barrier', 's_branch', 's_cbranch', 's_endpgm', 's_setprio', 's_sleep', 's_movk', 's_addk', 's_cmpk')):
        for a in args.split(','):
            a = a.strip()
            if re.fullmatch(r'-?(0x[0-9a-fA-F]+|\d+)', a):
                v = int(a, 0)
                if v < -16 or v > 64:
                    lit = True
            elif re.fullmatch(r'-?\d+\.\d+', a):
                if float(a) not in (0.5, -0.5, 1.0, -1.0, 2.0, -2.0, 4.0, -4.0, 0.0):
                    lit = True
            elif re.match(r'^[A-Za-z_(]', a) and not re.match(r'^(v|s|a)\d+$|^(v|s|a)\[|^vcc|^exec|^m0$|^scc$|^off$', a):
                lit = True
    return 8 if lit else 4

PROMOTABLE = ('v_exp_f32', 'v_add_f32', 'v_mul_f32', 'v_max_f32', 'v_mov_b32', 'v_rcp_f32', 'v_sub_f32', 'v_add_u32', 'v_and_b32', 'v_or_b32', 'v_xor_b32',
              'v_lshlrev_b32', 'v_lshrrev_b32', 'v_min_u32')

class Emit:
    def __init__(self):
        self.L = []
        self.lds_q = []
        self.vm_q = []
        self.lds_done = 0
        self.vm_done = 0
        self.align = True
    def raw(self, t):
        for line in t.split('\n'):
            if line.strip():
                self.L.append(line.strip())
    def __call__(self, t):
        self.raw(t)
    def lds(self, t, tag=None):
        self.L.append(t); self.lds_q.append(tag)
    def vm(self, t, tag=None):
        self.L.append(t); self.vm_q.append(tag)
    def _need(self, q, done, tags):
        idx = -1
        for i, tg in enumerate(q):
            if tg in tags:
                idx = max(idx, i)
        return idx
    def wait(self, lds=(), vm=(), lds_all=False, vm_all=False):
        parts = []
        if lds_all: li = len(self.lds_q) - 1
        else:
            for tg in lds: assert tg in self.lds_q, tg
            li = self._need(self.lds_q, self.lds_done, set(lds))
        if vm_all: vi = len(self.vm_q) - 1
        else:
            for tg in vm: assert tg in self.vm_q, tg
            vi = self._need(self.vm_q, self.vm_done, set(vm))
        if vi >= self.vm_done:
            n = min(len(self.vm_q) - 1 - vi, 63)
            parts.append(f"vmcnt({n})")
            self.vm_done = len(self.vm_q) - n
        if li >= self.lds_done:
            n = min(len(self.lds_q) - 1 - li, 15)
            parts.append(f"lgkmcnt({n})")
            self.lds_done = len(self.lds_q) - n
        if parts:
            self.L.append("s_waitcnt " + " ".join(parts))
    def reset_counters(self):
        self.lds_q = []; self.vm_q = []; self.lds_done = 0; self.vm_done = 0
    def text(self):
        out = []
        off = 0
        for t in self.L:
            sz = isize(t)
            if self.align and (sz == 8 or t.endswith(':')) and off % 8 == 4:
                j = len(out) - 1
                prev = out[j]
                op = prev.split()[0]
                if op in PROMOTABLE and isize(prev) == 4:
                    out[j] = prev.replace(op, op + '_e64', 1)
                else:
                    out.append('s_nop 0')
                off += 4
            out.append(t)
            off += sz
        return "\n".join(("" if (t.endswith(':') or t.startswith('.')) else "  ") + t for t in out) + "\n", off
```

```python
import sys, struct, math
from emit import Emit

KNAME = "standalone__gqa_softmax__near_ridge_kernel"
def f2u(x): return struct.unpack('<I', struct.pack('<f', x))[0]

KBASE, VBASE, PBASE, XBASE, LBASE = 0, 65536, 131072, 155648, 158720
LDS_BYTES = 161792
sQ, sK, sV, sO = 12, 16, 20, 24
sW, sG, sSUB, sQB, sKD, sVD, sC, sFLAG, sTHR = 28, 29, 30, 32, 35, 36, 37, 38, 39
sSTEP = 64
vKoff, vVoff, vQoff = 4, 8, 9
vKrd = 10
vVrd, vPrd, vPwr, vXwr, vXrd, vOoff = 18, 19, 20, 21, 22, 23
vNM, vL, vL2, vMP = 24, 200, 203, 27
SA, SB, PO, OO = 32, 80, 128, 152
vT = 208
aQ, aK, aV, aP = 0, 96, 128, 160

def vr(b, n=4): return f"v[{b}:{b+n-1}]"
def ar(b, n=4): return f"a[{b}:{b+n-1}]"
def sr(b, n=4): return f"s[{b}:{b+n-1}]"

def gen(nt=0, stamps=0, pat=0, codepf=1, ntq=0, nto=0, thr_log2=20):
    E = Emit()
    ntf = " nt" if nt else ""
    ntqf = " nt" if ntq else ""
    ntof = " nt" if nto else ""
    stamp_n = [0]
    def stamp():
        if stamps:
            k = stamp_n[0]; stamp_n[0] += 1
            assert k < 8
            E(f"s_memrealtime s[{84+2*k}:{85+2*k}]")
            E("s_waitcnt lgkmcnt(0)")
            E.lds_done = len(E.lds_q)

    E(f"{KNAME}:")
    stamp()
    E("s_cmp_ge_u32 s2, 256")
    E("s_cbranch_scc1 L_end")
    E("s_load_dwordx8 s[4:11], s[0:1], 0")
    if stamps: E("s_load_dwordx2 s[80:81], s[0:1], 40")
    E("v_lshrrev_b32 v1, 6, v0")
    E("v_and_b32 v2, 63, v0")
    E(f"v_readfirstlane_b32 s{sW}, v1")
    E("s_and_b32 s40, s2, 7\ns_lshr_b32 s41, s2, 3\ns_lshl_b32 s42, s40, 3\ns_lshr_b32 s43, s41, 2")
    E(f"s_add_u32 s{sG}, s42, s43\ns_and_b32 s{sSUB}, s41, 3")
    if codepf:
        E("s_getpc_b64 s[44:45]")
        E("L_pc:")
        E(f"s_lshl_b32 s46, s41, 2\ns_add_u32 s46, s46, s{sW}\ns_lshl_b32 s46, s46, 8")
        E("v_lshlrev_b32 v3, 7, v2")
        E("v_add_u32 v3, s46, v3")
        E("v_min_u32 v3, (L_codeend-L_pc-4), v3")
        E("s_mov_b64 exec, 3")
        E.vm(f"global_load_dword v{vT+47}, v3, s[44:45]", 'pf')
        E("s_mov_b64 exec, -1")
    E("v_lshrrev_b32 v3, 4, v2")
    E("v_and_b32 v30, 15, v2")
    E("v_xor_b32 v31, v30, v3")
    E(f"v_lshlrev_b32 v{vT}, 8, v3")
    for i in range(4):
        E(f"v_xor_b32 v{vT+1}, {4*i}, v31")
        E(f"v_lshl_add_u32 v{vKoff+i}, v{vT+1}, 4, v{vT}")
    E(f"v_lshlrev_b32 v{vT+1}, 2, v1")
    E(f"v_xor_b32 v{vT+1}, v{vT+1}, v31")
    E(f"v_lshl_add_u32 v{vQoff}, v{vT+1}, 4, v{vT}")
    E(f"v_lshlrev_b32 v{vT+1}, 2, v3")
    E(f"v_xor_b32 v{vT+1}, v{vT+1}, v30")
    E(f"v_lshl_add_u32 v{vVoff}, v{vT+1}, 4, v{vT}")
    E(f"s_lshl_b32 s40, s{sG}, 18\ns_lshl_b32 s41, s{sW}, 13\ns_add_u32 s40, s40, s41")
    for i in range(8):
        if pat == 0:
            E(f"s_add_u32 s{sSTEP+i}, s40, {i*32768}")
        elif pat == 2:
            E(f"s_add_u32 s42, s{sSUB}, {i}\ns_and_b32 s42, s42, 3\ns_or_b32 s42, s42, {i&4}\ns_lshl_b32 s42, s42, 15\ns_add_u32 s{sSTEP+i}, s40, s42")
        elif pat == 3:
            E(f"s_add_u32 s42, s{sSUB}, {i}\ns_and_b32 s42, s42, 1\ns_or_b32 s42, s42, {i&6}\ns_lshl_b32 s42, s42, 15\ns_add_u32 s{sSTEP+i}, s40, s42")
        E(f"s_add_u32 s{sSTEP+8+i}, s{sSTEP+i}, 4096")
    E(f"s_mul_i32 s{sQB}, s{sG}, 98304\ns_mul_i32 s42, s{sSUB}, 24576\ns_add_u32 s{sQB}, s{sQB}, s42")
    E(f"s_add_u32 s{sKD}, s41, {KBASE}\ns_add_u32 s{sVD}, s41, {VBASE}")
    E(f"s_mov_b32 s{sC}, {hex(f2u(math.log2(math.e)/math.sqrt(128.0)))}")
    E(f"s_mov_b32 s{sFLAG}, 0")
    E(f"s_mov_b32 s{sTHR}, {hex(f2u(2.0**thr_log2))}")
    E(f"s_lshl_b32 s47, s{sW}, 10\ns_add_u32 s48, s47, s{sQB}\ns_add_u32 s47, s47, {PBASE}")
    for t in range(3): E(f"v_mov_b32 v{vMP+t}, 0xff800000")
    E("s_waitcnt lgkmcnt(0)")
    for (srd, p, nb) in ((sQ, 4, 0x600000), (sK, 6, 0x1000000), (sV, 8, 0x1000000), (sO, 10, 0x600000)):
        E(f"s_mov_b32 s{srd}, s{p}\ns_mov_b32 s{srd+1}, s{p+1}\ns_mov_b32 s{srd+2}, {hex(nb)}\ns_mov_b32 s{srd+3}, 0x20000")

    E("L_restart:")
    def dma_items(kind, step):
        srd = sK if kind == 'K' else sV
        dst = sKD if kind == 'K' else sVD
        slot = step & 1
        items = []
        for i in range(8):
            def f(i=i):
                if i % 4 == 0:
                    E(f"s_add_u32 m0, s{dst}, {slot*32768 + (i//4)*4096}")
                    E("s_nop 0")
                vo = vKoff + (i & 3) if kind == 'K' else vVoff
                so = sSTEP + step + (8 if i >= 4 else 0)
                E.vm(f"buffer_load_dwordx4 v{vo}, {sr(srd)}, s{so} offen offset:{(i&3)*1024}{ntf} lds", (kind, step))
            items.append(f)
        return items
    for i in range(6):
        E(f"s_add_u32 m0, s47, {i*4096}")
        E(f"s_add_u32 s49, s48, {i*4096}")
        E.vm(f"buffer_load_dwordx4 v{vQoff}, {sr(sQ)}, s49 offen{ntqf} lds", 'Q')
    for f in dma_items('K', 0): f()
    for f in dma_items('K', 1): f()
    E("v_and_b32 v3, 31, v2")
    E("v_lshrrev_b32 v30, 5, v2")
    E("v_and_b32 v31, 15, v3")
    E("v_xor_b32 v31, v31, v30")
    E(f"v_lshlrev_b32 v{vT}, 8, v3")
    E(f"v_lshl_add_u32 v{vT}, v31, 4, v{vT}")
    E(f"s_lshl_b32 s41, s{sW}, 13")
    for s in range(8):
        E(f"v_xor_b32 v{vT+8+s}, {32*s}, v{vT}")
    for s in range(8):
        E(f"v_add_u32 v{vKrd+s}, s41, v{vT+8+s}")
        E(f"v_add_u32 v{vT+8+s}, {PBASE}, v{vT+8+s}")
    E(f"v_bfe_u32 v{vT}, v2, 2, 2")
    E(f"v_lshl_add_u32 v{vT+1}, v30, 2, v{vT}")
    E(f"v_bfe_u32 v{vT+2}, v2, 4, 1")
    E(f"v_bfe_u32 v{vT+3}, v2, 1, 1")
    E(f"v_lshl_add_u32 v{vT+2}, v{vT+2}, 1, v{vT+3}")
    E(f"v_lshl_add_u32 v{vT+2}, v1, 2, v{vT+2}")
    E(f"v_lshlrev_b32 v{vT+3}, 2, v{vT}")
    E(f"v_xor_b32 v{vT+2}, v{vT+2}, v{vT+3}")
    E(f"v_lshlrev_b32 v{vT+1}, 8, v{vT+1}")
    E(f"v_lshl_add_u32 v{vT+1}, v{vT+2}, 4, v{vT+1}")
    E(f"v_and_b32 v{vT+3}, 1, v2")
    E(f"v_lshl_add_u32 v{vT+1}, v{vT+3}, 3, v{vT+1}")
    E(f"v_add_u32 v{vVrd}, {VBASE}, v{vT+1}")
    E(f"v_lshlrev_b32 v{vT}, 4, v2")
    E(f"v_add_u32 v{vPrd}, {PBASE}, v{vT}")
    E(f"s_mul_i32 s41, s{sW}, 6144")
    E(f"v_add_u32 v{vPwr}, s41, v{vPrd}")
    E(f"v_lshlrev_b32 v{vT}, 5, v3")
    E(f"v_add_u32 v{vXrd}, {XBASE}, v{vT}")
    E(f"v_lshl_add_u32 v{vT+1}, v1, 1, v30")
    E(f"v_lshl_add_u32 v{vXwr}, v{vT+1}, 2, v{vXrd}")
    E(f"v_lshlrev_b32 v{vT}, 8, v3")
    E(f"v_lshl_add_u32 v{vT}, v1, 6, v{vT}")
    E(f"v_lshl_add_u32 v{vOoff}, v30, 4, v{vT}")
    for t in range(3):
        E(f"v_mov_b32 v{vL+t}, 0\nv_mov_b32 v{vL2+t}, 0")

    def Sbuf(step): return SA if step % 2 == 0 else SB
    def qk_mfma(step, t, s):
        d = Sbuf(step) + 16*t
        c = "0" if s == 0 else vr(d, 16)
        return f"v_mfma_f32_32x32x16_bf16 {vr(d,16)}, {ar(aK+4*s)}, {ar(aQ+(t*8+s)*4)}, {c}"
    def pv_mfma(step, kap, t):
        d = OO + 16*t
        c = "0" if (step == 0 and kap == 0) else vr(d, 16)
        return f"v_mfma_f32_32x32x16_bf16 {vr(d,16)}, {ar(aV+4*kap)}, {ar(aP+(kap*3+t)*4)}, {c}"
    def kread(step, s):
        return lambda: E.lds(f"ds_read_b128 {ar(aK+4*s)}, v{vKrd+s} offset:{(step&1)*32768}", ('Kf', step, s))
    def vread(step, kap, e):
        return lambda: E.lds(f"ds_read_b64_tr_b16 {ar(aV+4*kap+2*e,2)}, v{vVrd} offset:{(step&1)*32768+kap*4096+e*2048}", ('Vf', step, kap))
    def pread(step, kap, t):
        return lambda: E.lds(f"ds_read_b128 {ar(aP+(kap*3+t)*4)}, v{vPrd} offset:{(kap*3+t)*1024}", ('Pf', step, kap, t))
    def pwrite(step, t, u):
        return lambda: E.lds(f"ds_write_b128 v{vPwr}, {vr(PO+8*t+4*u)} offset:{(u*3+t)*1024}", ('Pw', step))
    def I(txt): return lambda: E(txt)
    def softmax_stream(step):
        S = Sbuf(step)
        out = []
        def fma(p):
            t = p // 8
            return [(I(f"v_fma_f32 v{S+2*p+j}, v{S+2*p+j}, s{sC}, v{vNM+t}"), 1, None) for j in range(2)]
        def ex(p):
            return [(I(f"v_exp_f32 v{S+2*p+j}, v{S+2*p+j}"), 2, None) for j in range(2)]
        def fin(p):
            t = p // 8
            return [(I(f"v_add_f32 v{vL+t}, v{vL+t}, v{S+2*p}"), 1, None),
                    (I(f"v_add_f32 v{vL2+t}, v{vL2+t}, v{S+2*p+1}"), 1, None),
                    (I(f"v_cvt_pk_bf16_f32 v{PO+p}, v{S+2*p}, v{S+2*p+1}"), 1, ('cvt', p))]
        for k in range(24 + 2):
            if k < 24: out += fma(k)
            if 0 <= k-1 < 24: out += ex(k-1)
            if 0 <= k-2 < 24: out += fin(k-2)
        return out

    def place(slots, items, s0, s1):
        n = len(items)
        for k, it in enumerate(items):
            pos = s0 + (k * (s1 - s0 + 1)) // n
            slots[pos].append(it)
    def place_units(slots, stream, budget, s0, s1):
        tot = sum(u for _, u, _ in stream)
        avail = sum(budget[s] for s in range(s0, s1+1))
        scale = tot / avail
        where = {}
        s = s0; acc = 0.0; cap = budget[s]*scale
        for (f, u, kind) in stream:
            while acc + u*0.5 > cap and s < s1:
                s += 1; cap += budget[s]*scale
            slots[s].append(f); acc += u
            if kind: where[kind] = s
        return where
    def run(mf, slots, pre_waits=None):
        for k, m in enumerate(mf):
            if pre_waits and k in pre_waits: pre_waits[k]()
            E(m)
            for f in slots[k]: f()

    E.wait(vm=['Q', ('K', 0)])
    E("s_barrier")
    stamp()
    reads = []
    for s in range(8):
        reads.append(kread(0, s))
        reads.append(lambda s=s: E.lds(f"ds_read_b128 {ar(aQ+s*4)}, v{vT+8+s} offset:0", ('Qf', 0, s)))
    for t in (1, 2):
        for s in range(8):
            reads.append(lambda s=s, t=t: E.lds(f"ds_read_b128 {ar(aQ+(t*8+s)*4)}, v{vT+8+s} offset:{t*8192}", ('Qf', t, s)))
    for f in reads[:12]: f()
    slots = [[] for _ in range(24)]
    place(slots, reads[12:], 0, 9)
    mf = [qk_mfma(0, t, s) for t in range(3) for s in range(8)]
    pw = {}
    for t in range(3):
        for s in range(8):
            pw[t*8+s] = (lambda t=t, s=s: E.wait(lds=[('Kf', 0, s), ('Qf', t, s)]))
    def maxchain(step, t):
        S = Sbuf(step) + 16*t
        return [I(f"v_max3_f32 v{vMP+t}, v{S+2*j}, v{S+2*j+1}, v{vMP+t}") for j in range(8)]
    place(slots, dma_items('V', 0), 8, 15)
    place(slots, maxchain(0, 0), 11, 14)
    place(slots, maxchain(0, 1), 19, 22)
    slots[15].append(lambda: E.wait(vm=[('K', 1)]))
    for s in range(8): slots[16+s].append(kread(1, s))
    run(mf, slots, pw)
    slots = [[] for _ in range(24)]
    mf = [qk_mfma(1, t, s) for t in range(3) for s in range(8)]
    pw = {s: (lambda s=s: E.wait(lds=[('Kf', 1, s)])) for s in range(8)}
    slots[0].append(lambda: E.lds(f"ds_write_b32 v{vXwr}, v{vMP} offset:0", 'Xw'))
    slots[0].append(lambda: E.lds(f"ds_write_b32 v{vXwr}, v{vMP+1} offset:1024", 'Xw'))
    place(slots, maxchain(0, 2), 2, 3)
    slots[3].append(lambda: E.lds(f"ds_write_b32 v{vXwr}, v{vMP+2} offset:2048", 'Xw'))
    def xbar():
        E.wait(lds=['Xw']); E("s_barrier")
        for t in range(3):
            E.lds(f"ds_read_b128 {vr(vT+8*t)}, v{vXrd} offset:{t*1024}", ('Xr', t))
            E.lds(f"ds_read_b128 {vr(vT+8*t+4)}, v{vXrd} offset:{t*1024+16}", ('Xr', t))
    slots[5].append(xbar)
    place(slots, dma_items('K', 2), 4, 11)
    def xred(t):
        b = vT + 8*t
        E.wait(lds=[('Xr', t)])
        E(f"v_max3_f32 v{b}, v{b}, v{b+1}, v{b+2}")
        E(f"v_max3_f32 v{b+3}, v{b+3}, v{b+4}, v{b+5}")
        E(f"v_max3_f32 v{b}, v{b}, v{b+6}, v{b+7}")
        E(f"v_max_f32 v{b}, v{b}, v{b+3}")
        E(f"v_mul_f32 v{vNM+t}, s{sC}, v{b}")
        E(f"v_sub_f32 v{vNM+t}, 0, v{vNM+t}")
    for t in range(3): slots[8+t].append(lambda t=t: xred(t))
    sm = softmax_stream(0)
    budget = {s: 1.0 for s in range(24)}
    budget[23] = 22.0
    where = place_units(slots, sm, budget, 11, 23)
    place(slots, dma_items('V', 1), 12, 22)
    for t in range(3):
        for u in range(2):
            slots[23].append(pwrite(0, t, u))
    slots[23].append(lambda: E.wait(vm=[('K', 2)]))
    for s in range(8): slots[23].append(kread(2, s))
    run(mf, slots, pw)
    stamp()
    for i in range(1, 9):
        E.wait(vm=[('V', i-1)], lds_all=True)
        E("s_barrier")
        if i in (4, 7, 8): stamp()
        doqk = i + 1 <= 7
        dosm = i <= 7
        last = i == 8
        rd = []
        for kap in range(8):
            rd += [vread(i-1, kap, 0), vread(i-1, kap, 1)] + [pread(i-1, kap, t) for t in range(3)]
        if doqk:
            mf = [qk_mfma(i+1, t, s) for t in range(3) for s in range(8)] + [pv_mfma(i-1, kap, t) for kap in range(8) for t in range(3)]
            n = 48
            slots = [[] for _ in range(n)]
            place(slots, rd, 0, 15)
            def ybar():
                E.wait(lds_all=True); E("s_barrier")
            slots[18].append(ybar)
            if i + 2 <= 7: place(slots, dma_items('K', i+2), 1, 22) if False else None
            if i + 2 <= 7:
                pass
            if i + 2 <= 7 and False:
                pass
            budget = {s: (3.0 if s < 16 else 5.0) for s in range(n)}
            where = place_units(slots, softmax_stream(i), budget, 0, 43)
            if i + 2 <= 7: place(slots, dma_items('K', i+2), 0, 17)
            if i + 1 <= 7: place(slots, dma_items('V', i+1), 20, 44)
            for t in range(3):
                for u in range(2):
                    sl = max(where[('cvt', t*8+4*u+3)] + 1, 19)
                    slots[sl].append(pwrite(i, t, u))
            if i + 2 <= 7:
                slots[39].append(lambda i=i: E.wait(vm=[('K', i+2)]))
                place(slots, [kread(i+2, s) for s in range(8)], 40, 45)
            run(mf, slots)
        elif not last:
            mf = [pv_mfma(i-1, kap, t) for kap in range(8) for t in range(3)]
            n = 24
            slots = [[] for _ in range(n)]
            for f in rd[:10]: f()
            sm = softmax_stream(i)
            for (f, u, k) in sm[:14]: f()
            place(slots, rd[10:], 0, 11)
            pw = {kap*3+t: (lambda kap=kap, t=t: E.wait(lds=[('Vf', i-1, kap), ('Pf', i-1, kap, t)])) for kap in range(8) for t in range(3)}
            def ybar():
                E.wait(lds_all=True); E("s_barrier")
            slots[14].append(ybar)
            budget = {s: (3.0 if s < 12 else 5.0) for s in range(n)}
            where = place_units(slots, sm[14:], budget, 0, 23)
            for t in range(3):
                for u in range(2):
                    sl = min(max(where[('cvt', t*8+4*u+3)] + 1, 15), 23)
                    slots[sl].append(pwrite(i, t, u))
            for t in range(3):
                slots[23].append(I(f"v_add_f32 v{vL+t}, v{vL+t}, v{vL2+t}"))
            for t in range(3):
                slots[23].append(lambda t=t: E.lds(f"ds_write_b32 v{vXwr}, v{vL+t} offset:{LBASE-XBASE+t*1024}", 'Lw'))
            run(mf, slots, pw)
        else:
            rd = []
            for kap in range(8):
                rd += [vread(7, kap, 0), vread(7, kap, 1), pread(7, kap, 0)]
            for t in (1, 2):
                rd += [pread(7, kap, t) for kap in range(8)]
            lr = []
            for t in range(3):
                lr.append(lambda t=t: E.lds(f"ds_read_b128 {vr(vT+8*t)}, v{vXrd} offset:{LBASE-XBASE+t*1024}", ('Lr', t)))
                lr.append(lambda t=t: E.lds(f"ds_read_b128 {vr(vT+8*t+4)}, v{vXrd} offset:{LBASE-XBASE+t*1024+16}", ('Lr', t)))
            mf = [pv_mfma(7, kap, t) for t in range(3) for kap in range(8)]
            slots = [[] for _ in range(24)]
            for f in rd[:12]: f()
            place(slots, rd[12:24], 0, 3)
            place(slots, lr, 4, 5)
            place(slots, rd[24:], 4, 9)
            pw = {t*8+kap: (lambda kap=kap, t=t: E.wait(lds=[('Vf', 7, kap), ('Pf', 7, kap, t)])) for kap in range(8) for t in range(3)}
            def lred(t):
                b = vT + 8*t
                E.wait(lds=[('Lr', t)])
                E(f"v_add_f32 v{b}, v{b}, v{b+1}\nv_add_f32 v{b+2}, v{b+2}, v{b+3}\nv_add_f32 v{b+4}, v{b+4}, v{b+5}\nv_add_f32 v{b+6}, v{b+6}, v{b+7}")
                E(f"v_add_f32 v{b}, v{b}, v{b+2}\nv_add_f32 v{b+4}, v{b+4}, v{b+6}")
                E(f"v_add_f32 v{vL+t}, v{b}, v{b+4}")
            for t in range(3): slots[7+t].append(lambda t=t: lred(t))
            def chk():
                E(f"v_max3_f32 v{vT}, v{vL}, v{vL+1}, v{vL+2}")
                E(f"v_add_f32 v{vT+1}, v{vL}, v{vL+1}")
                E(f"v_add_f32 v{vT+1}, v{vT+1}, v{vL+2}")
                for t in range(3): E(f"v_rcp_f32 v{vL2+t}, v{vL+t}")
                E(f"v_cmp_nge_f32 vcc, s{sTHR}, v{vT+1}")
                E(f"s_cmp_eq_u32 s{sFLAG}, 0")
                E("s_cselect_b64 s[40:41], vcc, 0")
                E("s_cmp_lg_u64 s[40:41], 0")
                E("s_cbranch_scc1 L_fallback")
            slots[10].append(chk)
            def outtile(t):
                items = []
                O = OO + 16*t
                W = SA + 8*t
                for j in range(8):
                    items.append(I(f"v_mul_f32 v{O+2*j}, v{O+2*j}, v{vL2+t}"))
                    items.append(I(f"v_mul_f32 v{O+2*j+1}, v{O+2*j+1}, v{vL2+t}"))
                for j in range(8):
                    items.append(I(f"v_cvt_pk_bf16_f32 v{W+j}, v{O+2*j}, v{O+2*j+1}"))
                items.append(I("s_nop 1"))
                for a in (0, 2):
                    items.append(I(f"v_permlane32_swap_b32 v{W+2*a}, v{W+2*a+2}"))
                    items.append(I(f"v_permlane32_swap_b32 v{W+2*a+1}, v{W+2*a+3}"))
                items.append(I(f"s_add_u32 s49, s{sQB}, {t*8192}"))
                for a in (0, 2):
                    items.append(lambda a=a: E.vm(f"buffer_store_dwordx4 {vr(W+2*a)}, v{vOoff}, {sr(sO)}, s49 offen offset:{a*16}{ntof}", 'st'))
                return items
            place(slots, outtile(0), 11, 17)
            place(slots, outtile(1), 19, 23)
            run(mf, slots, pw)
            E("s_nop 7\ns_nop 3")
            for f in outtile(2): f()
    if stamps:
        stamp()
        E.wait(vm_all=True)
        stamp()
        E("s_lshl_b32 s3, s2, 6\nv_mov_b32 v1, s3")
        order = [0, stamp_n[0]-1] + list(range(1, stamp_n[0]-1))
        for j, k in enumerate(order):
            E(f"v_mov_b32 v{32+2*j}, s{84+2*k}\nv_mov_b32 v{33+2*j}, s{85+2*k}")
        E("v_cmp_eq_u32 vcc, 0, v0\ns_and_saveexec_b64 s[40:41], vcc\ns_cbranch_execz L_end")
        for j in range(0, len(order), 2):
            E(f"global_store_dwordx4 v1, v[{32+2*j}:{35+2*j}], s[80:81] offset:{j*8}")
    E("L_end:")
    E("s_endpgm")
    E("L_fallback:")
    E("s_waitcnt vmcnt(0) lgkmcnt(0)")
    E("s_nop 15")
    E("s_barrier")
    E(f"s_mov_b32 s{sFLAG}, 1")
    E(f"s_lshl_b32 s40, s{sG}, 18\ns_lshl_b32 s41, s{sW}, 13\ns_add_u32 s40, s40, s41")
    E("s_mov_b32 s42, 0")
    E("L_fb_loop:")
    for i in range(8):
        if i % 4 == 0:
            E(f"s_add_u32 m0, s{sKD}, {(i//4)*4096}")
            E(f"s_add_u32 s43, s40, {(i//4)*4096}")
        E(f"buffer_load_dwordx4 v{vKoff+(i&3)}, {sr(sK)}, s43 offen offset:{(i&3)*1024} lds")
    E("s_waitcnt vmcnt(0)")
    for s in range(8):
        E(f"ds_read_b128 {ar(aK+4*s)}, v{vKrd+s} offset:0")
    E("s_waitcnt lgkmcnt(0)")
    for t in range(3):
        for s in range(8): E(qk_mfma(0, t, s))
    E("s_nop 15")
    for t in range(3):
        for j in range(8):
            E(f"v_max3_f32 v{vMP+t}, v{SA+16*t+2*j}, v{SA+16*t+2*j+1}, v{vMP+t}")
    E("s_add_u32 s40, s40, 32768\ns_add_u32 s42, s42, 1\ns_cmp_lt_u32 s42, 8\ns_cbranch_scc1 L_fb_loop")
    E("s_branch L_restart")
    E("L_codeend:")
    body, size = E.text()
    hdr = open('standalone__gqa_softmax__near_ridge.s.ref').read().split('\n')
    head = [l for l in hdr[:9] if l.startswith(';') and '@launch' not in l]
    out = "\n".join(head) + f"\n; @launch grid=(256,1,1) block=(256,1,1) lds={LDS_BYTES}\n"
    out += '.amdgcn_target "amdgcn-amd-amdhsa--gfx950"\n.text\n' + f".globl {KNAME}\n.p2align 8\n.type {KNAME},@function\n"
    out += body
    out += '.section .rodata,"a"\n.p2align 6\n' + f".amdhsa_kernel {KNAME}\n"
    out += "  .amdhsa_next_free_vgpr 512\n  .amdhsa_next_free_sgpr 102\n  .amdhsa_accum_offset 256\n  .amdhsa_group_segment_fixed_size 0\n  .amdhsa_kernarg_size 48\n  .amdhsa_user_sgpr_count 2\n  .amdhsa_user_sgpr_kernarg_segment_ptr 1\n  .amdhsa_system_sgpr_workgroup_id_x 1\n.end_amdhsa_kernel\n"
    return out, size

if __name__ == "__main__":
    name = sys.argv[1]
    kw = dict(a.split("=") for a in sys.argv[2:]); kw = {k: int(v) for k, v in kw.items()}
    txt, size = gen(**kw)
    open(name, "w").write(txt)
    print("code bytes", size)
```
